```python
import torch

def _softmax(x, axis=-1):
    return torch.softmax(x, dim=axis)
def _gelu(x):
    return torch.nn.functional.gelu(x, approximate="tanh")
def _silu(x):
    return torch.nn.functional.silu(x)
def _sigmoid(x):
    return torch.sigmoid(x)
def _layernorm(x, axis=-1, eps=1e-5):
    m = x.mean(dim=axis, keepdim=True)
    v = x.var(dim=axis, keepdim=True, unbiased=False)
    return (x - m) / torch.sqrt(v + eps)
def _scatter_add(tgt, idx, src, axis=0):
    return tgt.clone().index_add_(axis, idx, src)
def _segment_sum(src, seg, n):
    out = torch.zeros((n,) + src.shape[1:], dtype=src.dtype)
    return out.index_add_(0, seg, src)
def _pad(x, pw):
    flat = tuple(v for pair in reversed(pw) for v in pair)
    return torch.nn.functional.pad(x, flat)

kernel_name = 'standalone__gqa_softmax__near_ridge'

def setup_inputs():

    _w = (lambda a: (lambda t: t.to(torch.bfloat16) if t.is_floating_point() else t)(torch.as_tensor(a)))
    B, Hq, Hkv, Sq, Sk, D = 32, 32, 8, 256, 256, 128
    return {
        "q": _w((lambda *s: torch.randn(*s, dtype=torch.bfloat16) * 0.8)(B, Hq, Sq, D)),
        "k": _w((lambda *s: torch.randn(*s, dtype=torch.bfloat16) * 0.8)(B, Hkv, Sk, D)),
        "v": _w((lambda *s: torch.randn(*s, dtype=torch.bfloat16) * 0.05)(B, Hkv, Sk, D)),
    }

def reference(q, k, v):
    B, Hq, Sq, D = q.shape
    Hkv = k.shape[1]
    rep = Hq // Hkv
    k = (lambda x, n, axis: torch.repeat_interleave(x, n, dim=axis))(k, rep, axis=1)
    v = (lambda x, n, axis: torch.repeat_interleave(x, n, dim=axis))(v, rep, axis=1)
    scale = D ** -0.5
    scores = torch.einsum("bhqd,bhkd->bhqk", q, k) * scale
    p = _softmax(scores, axis=-1)
    return torch.einsum("bhqk,bhkd->bhqd", p, v)
```

```python
NAME = 'standalone__gqa_softmax__near_ridge_kernel'
import struct

def f2u(x):
    return struct.unpack('<I', struct.pack('<f', x))[0]

class Asm:
    def __init__(self):
        self.lines = []
    def __call__(self, s):
        for l in s.split('\n'):
            l = l.strip()
            if l:
                if l.endswith(':'):
                    self.lines.append(l)
                else:
                    self.lines.append('    ' + l)
    def c(self, s):
        self.lines.append('    ; ' + s)
    def text(self):
        return '\n'.join(self.lines) + '\n'

def vr(b, n=1):
    return f'v{b}' if n == 1 else f'v[{b}:{b+n-1}]'
def sr(b, n=1):
    return f's{b}' if n == 1 else f's[{b}:{b+n-1}]'

HEADER = '''; GQA attention forward: B=32 Hq=32 Hkv=8 Sq=Sk=256 D=128, bf16
; @launch grid=({grid},1,1) block=({block},1,1) lds={lds}
.amdgcn_target "amdgcn-amd-amdhsa--gfx950"
.text
.globl {name}
.p2align 8
.type {name},@function
{name}:
'''
FOOTER = '''.section .rodata,"a"
.p2align 6
.amdhsa_kernel {name}
  .amdhsa_next_free_vgpr {vgpr}
  .amdhsa_next_free_sgpr {sgpr}
  .amdhsa_accum_offset {accum}
  .amdhsa_group_segment_fixed_size 0
  .amdhsa_kernarg_size 48
  .amdhsa_user_sgpr_count 2
  .amdhsa_user_sgpr_kernarg_segment_ptr 1
  .amdhsa_system_sgpr_workgroup_id_x 1
.end_amdhsa_kernel
'''
```

```python
import sys
sys.path.insert(0, 'gen')
from common import *

C_SCALE = (128 ** -0.5) * 1.4426950408889634

def gen(ldflags='nt', stflags=''):
    a = Asm()
    SQ, SK, SV, SO = 12, 16, 20, 24
    S_W, S_C, S_T0, S_T1, S_TILE, S_KT = 28, 30, 32, 33, 34, 35
    V_GA = 200
    V_GV = 201
    V_KW = 202
    V_VW = 203
    V_KR = 204
    V_VR = 205
    V_M, V_L, V_T0, V_T1 = 206, 207, 208, 209
    QF = 128
    RING = 160
    a(f'''
    s_cmp_ge_u32 s2, 256
    s_cbranch_scc1 L_end
    s_load_dwordx4 s[4:7], s[0:1], 0
    s_load_dwordx4 s[8:11], s[0:1], 16
    v_lshrrev_b32 v2, 6, v0
    v_and_b32 v1, 63, v0
    v_readfirstlane_b32 s{S_W}, v2
    v_and_b32 v3, 15, v1
    v_lshrrev_b32 v4, 4, v1
    v_lshlrev_b32 v{V_GA}, 8, v3
    v_lshl_add_u32 v{V_GA}, v4, 4, v{V_GA}
    v_lshrrev_b32 v5, 5, v1
    v_and_b32 v6, 1, v4
    v_lshlrev_b32 v{V_GV}, 12, v5
    v_lshl_add_u32 v{V_GV}, v6, 10, v{V_GV}
    v_lshl_add_u32 v{V_GV}, v3, 4, v{V_GV}
    s_lshl_b32 s29, s{S_W}, 13
    v_lshlrev_b32 v{V_KW}, 10, v6
    v_lshl_add_u32 v{V_KW}, v5, 9, v{V_KW}
    v_lshl_add_u32 v{V_KW}, v3, 4, v{V_KW}
    v_add_u32 v{V_KW}, s29, v{V_KW}
    ''')
    a(f'''
    v_lshlrev_b32 v{V_VW}, 12, v5
    v_lshrrev_b32 v7, 2, v3
    v_lshl_add_u32 v{V_VW}, v7, 10, v{V_VW}
    v_lshl_add_u32 v{V_VW}, v6, 9, v{V_VW}
    v_and_b32 v7, 1, v3
    v_lshl_add_u32 v{V_VW}, v7, 8, v{V_VW}
    v_bfe_u32 v7, v3, 1, 1
    v_lshl_add_u32 v{V_VW}, v7, 6, v{V_VW}
    s_add_u32 s31, s29, 0x10000
    v_add_u32 v{V_VW}, s31, v{V_VW}
    v_lshlrev_b32 v{V_KR}, 4, v1
    v_add_u32 v{V_VR}, 0x10000, v{V_KR}
    s_mov_b32 s{S_C}, {hex(f2u(C_SCALE))}
    s_waitcnt lgkmcnt(0)
    s_lshl_b32 s3, s2, 18
    s_add_u32 s{SQ}, s4, s3
    s_addc_u32 s{SQ+1}, s5, 0
    s_and_b32 s{SQ+1}, s{SQ+1}, 0xffff
    s_mov_b32 s{SQ+2}, 0x40000
    s_mov_b32 s{SQ+3}, 0x20000
    s_add_u32 s{SO}, s10, s3
    s_addc_u32 s{SO+1}, s11, 0
    s_and_b32 s{SO+1}, s{SO+1}, 0xffff
    s_mov_b32 s{SO+2}, 0x40000
    s_mov_b32 s{SO+3}, 0x20000
    s_lshl_b32 s3, s2, 16
    s_add_u32 s{SK}, s6, s3
    s_addc_u32 s{SK+1}, s7, 0
    s_and_b32 s{SK+1}, s{SK+1}, 0xffff
    s_mov_b32 s{SK+2}, 0x10000
    s_mov_b32 s{SK+3}, 0x20000
    s_add_u32 s{SV}, s8, s3
    s_addc_u32 s{SV+1}, s9, 0
    s_and_b32 s{SV+1}, s{SV+1}, 0xffff
    s_mov_b32 s{SV+2}, 0x10000
    s_mov_b32 s{SV+3}, 0x20000
    s_add_u32 s36, s29, 4096
    ''')
    KR, VR = 32, 64
    for i in range(8):
        m, b = i // 2, i % 2
        so = 's29' if b == 0 else 's36'
        a(f'buffer_load_dwordx4 {vr(KR+4*i,4)}, v{V_GA}, s[{SK}:{SK+3}], {so} offen offset:{64*m} {ldflags}')
    for i in range(8):
        a(f'buffer_load_dwordx4 {vr(VR+4*i,4)}, v{V_GV}, s[{SV}:{SV+3}], s29 offen offset:{2048*(i//4)+256*(i%4)} {ldflags}')
    for i in range(8):
        m, b = i // 2, i % 2
        a(f's_waitcnt vmcnt({15-i})')
        for w in range(4):
            r = KR + 4*i + w
            a(f'''
            v_lshlrev_b32 v8, 16, v{r}
            v_and_b32 v9, 0xffff0000, v{r}
            v_mul_f32 v8, s{S_C}, v8
            v_mul_f32 v9, s{S_C}, v9
            v_cvt_pk_bf16_f32 v{r}, v8, v9
            ''')
        a(f'ds_write_b128 v{V_KW}, {vr(KR+4*i,4)} offset:{m*2048+b*256}')
    a('s_waitcnt vmcnt(0)')
    a('s_mov_b32 s37, 0x05040100')
    a('s_mov_b32 s38, 0x07060302')
    for e in range(8):
        dst = 96 + 4*(e % 2)
        sel = 's37' if e % 2 == 0 else 's38'
        for n in range(4):
            r0 = VR + 4*(2*n) + e//2
            r1 = VR + 4*(2*n+1) + e//2
            a(f'v_perm_b32 v{dst+n}, v{r1}, v{r0}, {sel}')
        a(f'ds_write_b128 v{V_VW}, {vr(dst,4)} offset:{(e//4)*128+(e%4)*16}')
        a('s_nop 1')
    a('s_waitcnt lgkmcnt(0)')
    a('s_barrier')
    a(f's_mov_b32 s{S_TILE}, 0')
    a('L_tile:')
    a(f'''
    s_lshl_b32 s{S_T0}, s{S_TILE}, 3
    s_add_u32 s{S_T0}, s{S_T0}, s{S_W}
    s_lshl_b32 s{S_T0}, s{S_T0}, 13
    s_add_u32 s{S_T1}, s{S_T0}, 4096
    ''')
    for i in range(8):
        m, b = i // 2, i % 2
        so = f's{S_T0}' if b == 0 else f's{S_T1}'
        a(f'buffer_load_dwordx4 {vr(QF+4*i,4)}, v{V_GA}, s[{SQ}:{SQ+3}], {so} offen offset:{64*m} {ldflags}')
    a('s_waitcnt vmcnt(0)')
    for m in range(4):
        for w in range(4):
            a(f'v_permlane16_swap_b32 v{QF+8*m+w}, v{QF+8*m+4+w}')
    D = 6
    seq = [(kt, j) for kt in range(8) for j in range(8)]
    def kread(n):
        kt, j = seq[n]
        a(f'ds_read_b128 {vr(RING+4*(n%8),4)}, v{V_KR} offset:{(kt*8+j)*1024}')
    for n in range(D):
        kread(n)
    for n in range(64):
        kt, j = seq[n]
        if n + D < 64:
            kread(n + D)
            a(f's_waitcnt lgkmcnt({D})')
        else:
            a(f's_waitcnt lgkmcnt({63-n})')
        c = '0' if j == 0 else vr(16*kt, 16)
        a(f'v_mfma_f32_32x32x16_bf16 {vr(16*kt,16)}, {vr(RING+4*(n%8),4)}, {vr(QF+4*j,4)}, {c}')
    a('s_nop 15')
    a(f'v_max3_f32 v{V_M}, v0, v1, v2')
    for r in range(3, 127, 2):
        a(f'v_max3_f32 v{V_M}, v{V_M}, v{r}, v{r+1}')
    a(f'v_max_f32 v{V_M}, v{V_M}, v127')
    a(f'''
    v_mov_b32 v{V_T0}, v{V_M}
    s_nop 1
    v_permlane32_swap_b32 v{V_M}, v{V_T0}
    s_nop 1
    v_max_f32 v{V_M}, v{V_M}, v{V_T0}
    v_mov_b32 v{V_L}, 0
    ''')
    for r in range(0, 128, 2):
        a(f'''
        v_sub_f32 v{r}, v{r}, v{V_M}
        v_sub_f32 v{r+1}, v{r+1}, v{V_M}
        v_exp_f32 v{r}, v{r}
        v_exp_f32 v{r+1}, v{r+1}
        s_nop 0
        v_add_f32 v{V_L}, v{V_L}, v{r}
        v_add_f32 v{V_L}, v{V_L}, v{r+1}
        v_cvt_pk_bf16_f32 v{r//2}, v{r}, v{r+1}
        ''')
    seq = [(ks, t) for ks in range(16) for t in range(4)]
    def vread(n):
        ks, t = seq[n]
        a(f'ds_read_b128 {vr(RING+4*(n%8),4)}, v{V_VR} offset:{(ks*4+t)*1024}')
    for n in range(D):
        vread(n)
    for n in range(64):
        ks, t = seq[n]
        if n + D < 64:
            vread(n + D)
            a(f's_waitcnt lgkmcnt({D})')
        else:
            a(f's_waitcnt lgkmcnt({63-n})')
        c = '0' if ks == 0 else vr(64+16*t, 16)
        a(f'v_mfma_f32_32x32x16_bf16 {vr(64+16*t,16)}, {vr(RING+4*(n%8),4)}, {vr(4*ks,4)}, {c}')
    a(f'''
    v_mov_b32 v{V_T0}, v{V_L}
    s_nop 1
    v_permlane32_swap_b32 v{V_L}, v{V_T0}
    s_nop 1
    v_add_f32 v{V_L}, v{V_L}, v{V_T0}
    v_rcp_f32 v{V_L}, v{V_L}
    s_nop 15
    ''')
    for t in range(4):
        O = 64 + 16*t
        for r in range(16):
            a(f'v_mul_f32 v{O+r}, v{O+r}, v{V_L}')
        for i in range(8):
            a(f'v_cvt_pk_bf16_f32 v{O+i}, v{O+2*i}, v{O+2*i+1}')
        a('s_nop 1')
        for w in range(4):
            a(f'v_permlane16_swap_b32 v{O+w}, v{O+4+w}')
        a(f'buffer_store_dwordx4 {vr(O,4)}, v{V_GA}, s[{SO}:{SO+3}], s{S_T0} offen offset:{64*t} {stflags}')
        a(f'buffer_store_dwordx4 {vr(O+4,4)}, v{V_GA}, s[{SO}:{SO+3}], s{S_T1} offen offset:{64*t} {stflags}')
    a(f'''
    s_waitcnt vmcnt(0)
    s_add_u32 s{S_TILE}, s{S_TILE}, 1
    s_cmp_lt_u32 s{S_TILE}, 4
    s_cbranch_scc1 L_tile
    L_end:
    s_endpgm
    ''')
    return HEADER.format(grid=256, block=512, lds=131072, name=NAME) + a.text() + FOOTER.format(name=NAME, vgpr=256, sgpr=64, accum=256)

if __name__ == '__main__':
    out = sys.argv[1] if len(sys.argv) > 1 else 'standalone__gqa_softmax__near_ridge.s'
    open(out, 'w').write(gen())
    print('wrote', out)
```

```python
import sys, re
sys.path.insert(0, 'bench')
NAME = 'standalone__gqa_softmax__near_ridge_kernel'

def pat_setup(pat, vreg, vtmp):
    s = ''
    if pat == 'lin':
        s += f'    v_lshlrev_b32 v{vreg}, 4, v1\n    v_add_u32 v{vreg+1}, 0x1000, v{vreg}\n'
        return s, [(vreg + j//4, 1024*(j%4)) for j in range(8)]
    if pat == 'frag16':
        s += f'    v_and_b32 v{vtmp}, 15, v1\n    v_lshlrev_b32 v{vreg}, 8, v{vtmp}\n    v_lshrrev_b32 v{vtmp}, 4, v1\n    v_lshl_add_u32 v{vreg}, v{vtmp}, 4, v{vreg}\n    v_add_u32 v{vreg+1}, 0x1000, v{vreg}\n'
        return s, [(vreg + j//4, 64*(j%4)) for j in range(8)]
    raise ValueError(pat)

def memk(lab, qpat='lin', opat='lin', order='Q0 K V Q1 Q2 Q3', ldflags='', stflags='', kvflags='', dostore=True, doload=True, to_ws=False):
    s = f'''.p2align 8
.globl {lab}
.type {lab},@function
{lab}:
    s_cmp_ge_u32 s2, 256
    s_cbranch_scc1 L_end_{lab}
    s_load_dwordx4 s[4:7], s[0:1], 0
    s_load_dwordx4 s[8:11], s[0:1], 16
    s_load_dwordx2 s[12:13], s[0:1], 40
    v_lshrrev_b32 v2, 6, v0
    v_and_b32 v1, 63, v0
    v_readfirstlane_b32 s20, v2
'''
    sq, ql = pat_setup(qpat, 4, 3)
    so, ol = pat_setup(opat, 6, 3)
    s += sq + so
    ob = ('s12', 's13') if to_ws else ('s10', 's11')
    s += f'''    v_lshlrev_b32 v8, 4, v1
    s_waitcnt lgkmcnt(0)
    s_lshl_b32 s14, s2, 18
    s_add_u32 s24, s4, s14
    s_addc_u32 s25, s5, 0
    s_and_b32 s25, s25, 0xffff
    s_mov_b32 s26, 0x40000
    s_mov_b32 s27, 0x20000
    s_add_u32 s36, {ob[0]}, s14
    s_addc_u32 s37, {ob[1]}, 0
    s_and_b32 s37, s37, 0xffff
    s_mov_b32 s38, 0x40000
    s_mov_b32 s39, 0x20000
    s_lshl_b32 s14, s2, 16
    s_add_u32 s28, s6, s14
    s_addc_u32 s29, s7, 0
    s_and_b32 s29, s29, 0xffff
    s_mov_b32 s30, 0x10000
    s_mov_b32 s31, 0x20000
    s_add_u32 s32, s8, s14
    s_addc_u32 s33, s9, 0
    s_and_b32 s33, s33, 0xffff
    s_mov_b32 s34, 0x10000
    s_mov_b32 s35, 0x20000
'''
    for t in range(4):
        s += f'    s_lshl_b32 s{44+t}, s20, 13\n    s_add_u32 s{44+t}, s{44+t}, {t*65536}\n'
    s += '    s_lshl_b32 s21, s20, 13\n'
    seq = order.split()
    if doload:
        for o in seq:
            if o[0] == 'Q':
                t = int(o[1])
                for j, (vr, off) in enumerate(ql):
                    r = 32 + t*32 + j*4
                    s += f'    buffer_load_dwordx4 v[{r}:{r+3}], v{vr}, s[24:27], s{44+t} offen offset:{off} {ldflags}\n'
            else:
                srd = 28 if o == 'K' else 32
                lbase = 0 if o == 'K' else 65536
                for j in range(8):
                    s += f'    s_add_u32 s22, s21, {j*1024}\n    s_add_u32 s23, s22, {lbase}\n    s_mov_b32 m0, s23\n    s_nop 0\n'
                    s += f'    buffer_load_dwordx4 v8, s[{srd}:{srd+3}], s22 offen {kvflags} lds\n'
    pos = {o: i for i, o in enumerate(seq)}
    extra = 0
    for t in range(4):
        if doload:
            need = pos[f'Q{t}']
            if t == 0:
                need = max(need, pos['K'], pos['V'])
            n = (len(seq) - 1 - need)*8 + extra
            s += f'    s_waitcnt vmcnt({min(n,63)})\n'
        if dostore:
            for j, (vr, off) in enumerate(ol):
                r = 32 + t*32 + j*4
                s += f'    buffer_store_dwordx4 v[{r}:{r+3}], v{vr}, s[36:39], s{44+t} offen offset:{off} {stflags}\n'
            extra += 8
    s += f'''    s_waitcnt vmcnt(0)
L_end_{lab}:
    s_endpgm
'''
    return s

def nullk(lab):
    return f'''.p2align 8
.globl {lab}
.type {lab},@function
{lab}:
    s_endpgm
'''

def desc(lab):
    return f'''.p2align 6
.amdhsa_kernel {lab}
  .amdhsa_next_free_vgpr 256
  .amdhsa_next_free_sgpr 102
  .amdhsa_accum_offset 256
  .amdhsa_group_segment_fixed_size 0
  .amdhsa_kernarg_size 48
  .amdhsa_user_sgpr_count 2
  .amdhsa_user_sgpr_kernarg_segment_ptr 1
  .amdhsa_system_sgpr_workgroup_id_x 1
.end_amdhsa_kernel
'''

def build(base, seq, extra):
    src = open(base).read()
    lines = src.split('\n')
    out = []
    for l in lines:
        if l.startswith('; @launch'):
            for k in seq:
                lab = NAME if k == 'real' else k
                out.append(f'; @launch kernel={lab} grid=(256,1,1) block=(512,1,1) lds=163840')
        else:
            out.append(l)
    src = '\n'.join(out)
    i = src.index('.section .rodata')
    code = ''.join(extra.values())
    descs = ''.join(desc(k) for k in extra)
    return src[:i] + code + src[i:] + descs

if __name__ == '__main__':
    base = 'v3_p1.s'
    cases = {
      'd_real': (['real'], {}),
      'd_rr': (['real', 'real'], {}),
      'd_null': (['null_kernel', 'real'], {'null_kernel': nullk('null_kernel')}),
      'd_mem': (['mem_kernel', 'real'], {'mem_kernel': memk('mem_kernel')}),
      'd_ld': (['mem_kernel', 'real'], {'mem_kernel': memk('mem_kernel', dostore=False)}),
      'd_st': (['mem_kernel', 'real'], {'mem_kernel': memk('mem_kernel', doload=False)}),
      'd_mem_mem': (['mem_kernel', 'mem_kernel', 'real'], {'mem_kernel': memk('mem_kernel')}),
      'd_mem_nt': (['mem_kernel', 'real'], {'mem_kernel': memk('mem_kernel', ldflags='nt', stflags='nt', kvflags='nt')}),
      'd_mem_f16': (['mem_kernel', 'real'], {'mem_kernel': memk('mem_kernel', qpat='frag16', opat='frag16')}),
      'd_st_ws': (['mem_kernel', 'real'], {'mem_kernel': memk('mem_kernel', doload=False, to_ws=True)}),
      'd_null2': (['null_kernel', 'null_kernel', 'null_kernel', 'real'], {'null_kernel': nullk('null_kernel')}),
      'd_rrr': (['real', 'real', 'real'], {}),
    }
    for n, (seq, extra) in cases.items():
        open(f'diag/{n}.s', 'w').write(build(base, seq, extra))
    print(' '.join(cases))
```

```python
import sys
sys.path.insert(0, 'bench'); sys.path.insert(0, 'gen')
from gen_diag import build
def enc(lab, idx, stat, sel, c):
    s = f'''.p2align 8
.globl {lab}
.type {lab},@function
{lab}:
    s_cmp_lg_u32 s2, 0
    s_cbranch_scc1 L_end_{lab}
    v_lshrrev_b32 v2, 6, v0
    s_nop 1
    v_readfirstlane_b32 s20, v2
    s_cmp_lg_u32 s20, 0
    s_cbranch_scc1 L_end_{lab}
    s_memrealtime s[20:21]
    s_load_dwordx2 s[4:5], s[0:1], 40
    v_lshlrev_b32 v1, 7, v0
    s_waitcnt lgkmcnt(0)
    s_and_b32 s5, s5, 0xffff
    s_mov_b32 s6, 0x40000
    s_mov_b32 s7, 0x20000
'''
    for i in range(32):
        s += f'    s_mov_b32 s8, {i*8192}\n    buffer_load_dword v{10+i}, v1, s[4:7], s8 offen\n    buffer_load_dword v{50+i}, v1, s[4:7], s8 offen offset:{4*idx}\n'
        if i % 16 == 15: s += '    s_waitcnt vmcnt(0)\n'
    s += '    v_mov_b32 v3, v10\n'
    for i in range(1, 32): s += f'    v_min_u32 v3, v3, v{10+i}\n'
    s += '    s_nop 1\n    v_readlane_b32 s10, v3, 0\n'
    for l in range(1, 64): s += f'    v_readlane_b32 s11, v3, {l}\n    s_min_u32 s10, s10, s11\n'
    for i in range(32): s += f'    v_subrev_u32 v{50+i}, s10, v{50+i}\n'
    op = {'max': 'v_max_u32', 'mean': 'v_add_u32', 'min': 'v_min_u32'}[stat]
    sop = {'max': 's_max_u32', 'mean': 's_add_u32', 'min': 's_min_u32'}[stat]
    s += '    v_mov_b32 v4, v50\n'
    for i in range(1, 32): s += f'    {op} v4, v4, v{50+i}\n'
    lanes = [l for l in range(64) if sel == 'all' or (sel == 'a' and (l & 4) == 0) or (sel == 'b' and (l & 4))]
    s += f'    s_nop 1\n    v_readlane_b32 s12, v4, {lanes[0]}\n'
    for l in lanes[1:]: s += f'    v_readlane_b32 s11, v4, {l}\n    {sop} s12, s12, s11\n'
    if stat == 'mean':
        n = len(lanes) * 32
        sh = n.bit_length() - 1
        s += f'    s_mul_i32 s12, s12, {c}\n    s_lshr_b32 s12, s12, {sh}\n'
    else:
        s += f'    s_mul_i32 s12, s12, {c}\n'
    s += f'''    s_min_u32 s12, s12, 100000
L_spin_{lab}:
    s_memrealtime s[22:23]
    s_waitcnt lgkmcnt(0)
    s_sub_u32 s13, s22, s20
    s_cmp_lt_u32 s13, s12
    s_cbranch_scc1 L_spin_{lab}
L_end_{lab}:
    s_endpgm
'''
    return s

if __name__ == '__main__':
    base = sys.argv[1]; pref = sys.argv[2]
    names = 'start convA strm bar1 bar2 bar3 t0 t1 t2 lastst done'.split()
    for spec in sys.argv[3:]:
        nm, stat, sel, c = spec.split(':')
        idx = names.index(nm)
        code = enc('enc_kernel', idx, stat, sel, int(c))
        fn = f'diag/{pref}_{nm}_{stat}_{sel}_{c}.s'
        open(fn, 'w').write(build(base, ['real', 'enc_kernel'], {'enc_kernel': code}))
        print(fn)
```

```python
import sys
sys.path.insert(0, 'bench'); sys.path.insert(0, 'gen')
from gen_diag import build
def enc_gap(lab, c, mode):
    s = f'''.p2align 8
.globl {lab}
.type {lab},@function
{lab}:
    s_memrealtime s[20:21]
    s_cmp_lg_u32 s2, 0
    s_cbranch_scc1 L_end_{lab}
    v_lshrrev_b32 v2, 6, v0
    s_nop 1
    v_readfirstlane_b32 s24, v2
    s_cmp_lg_u32 s24, 0
    s_cbranch_scc1 L_end_{lab}
    s_load_dwordx2 s[4:5], s[0:1], 40
    v_lshlrev_b32 v1, 7, v0
    s_waitcnt lgkmcnt(0)
    s_and_b32 s5, s5, 0xffff
    s_mov_b32 s6, 0x80000
    s_mov_b32 s7, 0x20000
'''
    if mode == 'done':
        for i in range(32):
            s += f'    s_mov_b32 s8, {i*8192}\n    buffer_load_dword v{50+i}, v1, s[4:7], s8 offen offset:40\n'
        s += '    s_waitcnt vmcnt(0)\n    v_mov_b32 v4, v50\n'
        for i in range(1, 32): s += f'    v_max_u32 v4, v4, v{50+i}\n'
        s += '    s_nop 1\n    v_readlane_b32 s12, v4, 0\n'
        for l in range(1, 64): s += f'    v_readlane_b32 s11, v4, {l}\n    s_max_u32 s12, s12, s11\n'
    else:
        s += '    v_mov_b32 v1, 0x40000\n    buffer_load_dword v4, v1, s[4:7], 0 offen\n    s_waitcnt vmcnt(0)\n    s_nop 1\n    v_readlane_b32 s12, v4, 0\n'
    s += f'''    s_sub_u32 s12, s20, s12
    s_mul_i32 s12, s12, {c}
    s_min_u32 s12, s12, 100000
L_spin_{lab}:
    s_memrealtime s[22:23]
    s_waitcnt lgkmcnt(0)
    s_sub_u32 s13, s22, s20
    s_cmp_lt_u32 s13, s12
    s_cbranch_scc1 L_spin_{lab}
L_end_{lab}:
    s_endpgm
'''
    return s
def mark(lab):
    return f'''.p2align 8
.globl {lab}
.type {lab},@function
{lab}:
    s_cmp_lg_u32 s2, 0
    s_cbranch_scc1 L_end_{lab}
    s_load_dwordx2 s[4:5], s[0:1], 40
    s_memrealtime s[20:21]
    s_waitcnt lgkmcnt(0)
    s_and_b32 s5, s5, 0xffff
    s_mov_b32 s6, 0x80000
    s_mov_b32 s7, 0x20000
    v_mov_b32 v1, 0x40000
    v_mov_b32 v2, s20
    buffer_store_dword v2, v1, s[4:7], 0 offen
    s_waitcnt vmcnt(0)
L_end_{lab}:
    s_endpgm
'''
if __name__ == '__main__':
    base = sys.argv[1]; pref = sys.argv[2]
    for c in [int(x) for x in sys.argv[3:]]:
        fn = f'diag/{pref}_gapdone_{c}.s'
        open(fn, 'w').write(build(base, ['real', 'enc_kernel'], {'enc_kernel': enc_gap('enc_kernel', c, 'done')})); print(fn)
        fn = f'diag/{pref}_gapmark_{c}.s'
        open(fn, 'w').write(build(base, ['real', 'mark_kernel', 'enc_kernel'], {'mark_kernel': mark('mark_kernel'), 'enc_kernel': enc_gap('enc_kernel', c, 'mark')})); print(fn)
```

```python
import re

class I:
    __slots__ = ('text', 'ds', 'vm', 'nds', 'nvm', 'also_ds')
    def __init__(self, text, ds=None, vm=None, nds=(), nvm=(), also_ds=()):
        self.text = text; self.ds = ds; self.vm = vm
        self.nds = tuple(nds); self.nvm = tuple(nvm); self.also_ds = tuple(also_ds)
    def __repr__(self): return self.text

SEEN = set()
RELAX = False
def insert_waits(items, ds_q=None, vm_q=None):
    ds_list = list(ds_q or []); vm_list = list(vm_q or [])
    ds_done = 0; vm_done = 0
    out = []
    for it in items:
        wl = None; wv = None
        if it.nds:
            for t in it.nds: assert t in ds_list or t in SEEN, ('never issued', t, it.text)
            idx = max([ds_list.index(t) for t in it.nds if t in ds_list] + [-1]) + 1
            if idx > ds_done:
                for t in it.also_ds:
                    if t in ds_list:
                        idx = max(idx, ds_list.index(t) + 1)
                wl = len(ds_list) - idx
                if wl > 15: wl = 15
                ds_done = len(ds_list) - wl
        if it.nvm:
            for t in it.nvm: assert t in vm_list or t in SEEN, ('never issued', t, it.text)
            idx = max([vm_list.index(t) for t in it.nvm if t in vm_list] + [-1]) + 1
            if idx > vm_done:
                wv = len(vm_list) - idx
                assert wv <= 63, ('vmcnt overflow', it.text, wv)
                vm_done = idx
        if wl is not None or wv is not None:
            s = 's_waitcnt'
            if wv is not None: s += f' vmcnt({wv})'
            if wl is not None: s += f' lgkmcnt({wl})'
            out.append(I(s))
        out.append(it)
        if it.ds is not None:
            assert it.ds not in ds_list, it.ds
            ds_list.append(it.ds); SEEN.add(it.ds)
        if it.vm is not None:
            assert it.vm not in vm_list, it.vm
            vm_list.append(it.vm); SEEN.add(it.vm)
        if len(vm_list) - vm_done > 63:
            assert RELAX, ('too many vm outstanding', it.text)
            vm_done = len(vm_list) - 63
    return out, ds_list[ds_done:], vm_list[vm_done:]

_reg = re.compile(r'\b([vsa])\[(\d+):(\d+)\]|\b([vsa])(\d+)\b')
def regs(tok):
    r = set()
    for m in _reg.finditer(tok):
        if m.group(1):
            r |= {(m.group(1), i) for i in range(int(m.group(2)), int(m.group(3)) + 1)}
        else:
            r.add((m.group(4), int(m.group(5))))
    return r

TRANS = ('v_exp_f32', 'v_rcp_f32', 'v_log_f32', 'v_rsq_f32', 'v_sqrt_f32')
def split_ops(t):
    op = t.split()[0]
    rest = t[len(op):].strip()
    return op, ([x.strip() for x in re.split(r',(?![^\[]*\])', rest)] if rest else [])

def classify(text):
    t = text.split(';')[0].strip()
    if not t or t.endswith(':'): return ('label', set(), set(), None)
    op, ops = split_ops(t)
    U = lambda l: set().union(*[regs(o) for o in l]) if l else set()
    if op.startswith('v_mfma'):
        return ('mfma', regs(ops[0]), regs(ops[1]) | regs(ops[2]) | regs(ops[3]), (regs(ops[0]), regs(ops[3]), regs(ops[1]) | regs(ops[2])))
    if op.startswith('v_permlane'):
        r = regs(ops[0]) | regs(ops[1]); return ('perm', r, r, None)
    if op.startswith('v_cmp'):
        w = regs(ops[0]) | ({('s', 'vcc')} if ops[0] == 'vcc' else set())
        return ('valu_sw', w, U(ops[1:]), None)
    if op.startswith('v_readfirstlane') or op.startswith('v_readlane'):
        return ('rdlane', regs(ops[0]), U(ops[1:]), None)
    if op.startswith('v_'):
        base = op.replace('_e32', '').replace('_e64', '')
        k = 'trans' if base in TRANS else 'valu'
        rd = U(ops[1:])
        if base in ('v_cndmask_b32',) and (len(ops) == 3 or ops[-1] == 'vcc'): rd.add(('s', 'vcc'))
        if base in ('v_fmac_f32', 'v_mac_f32', 'v_writelane_b32'): rd |= regs(ops[0])
        return (k, regs(ops[0]), rd, None)
    if op.startswith('buffer_load') or op.startswith('global_load'):
        return ('vload', regs(ops[0]), U(ops[1:]), None)
    if op.startswith('buffer_store') or op.startswith('global_store'):
        return ('vstore', set(), U(ops), (regs(ops[0]) if op.startswith('buffer') else regs(ops[1]), op))
    if op.startswith('ds_read'):
        return ('dsr', regs(ops[0]), regs(ops[1]), None)
    if op.startswith('ds_bpermute'):
        return ('dsr', regs(ops[0]), U(ops[1:]), None)
    if op.startswith('ds_write'):
        return ('dsw', set(), U(ops), None)
    if op == 's_nop':
        return ('nop', set(), set(), int(ops[0]))
    if op.startswith('s_'):
        w = regs(ops[0]) if ops and not op.startswith(('s_cmp', 's_bitcmp', 's_waitcnt', 's_cbranch', 's_branch', 's_barrier', 's_setprio', 's_endpgm', 's_sleep')) else set()
        if ops and ops[0] == 'vcc': w = {('s', 'vcc')}
        rd = U(ops[1:])
        if op.startswith(('s_cmp', 's_bitcmp')): rd = U(ops)
        return ('salu', w, rd, None)
    raise ValueError('unknown instr: ' + text)

VALUISH = ('valu', 'trans', 'perm', 'valu_sw', 'rdlane')
isv = lambda S: {a for a in S if a[0] in 'va'}
def check_hazards(texts, verbose=True, raw=False):
    ins = []; posmap = []
    for p, t in enumerate(texts):
        c = classify(t)
        if c[0] == 'label': continue
        ins.append((t, c)); posmap.append(p)
    errs = []
    def back(i, maxd):
        st = 0; j = i - 1
        while j >= 0 and st < maxd:
            yield j, st
            k = ins[j][1]
            st += (k[3] + 1) if k[0] == 'nop' else 1
            j -= 1
    for i, (t, (k, w, r, x)) in enumerate(ins):
        v_r = isv(r); v_w = isv(w); s_r = {a for a in r if a[0] == 's'}
        for j, st in back(i, 12):
            tj, (kj, wj, rj, xj) = ins[j]
            def err(need, what):
                if st < need:
                    msg = f'{what}: need {need} have {st}\n   [{j}] {tj}\n   [{i}] {t}'
                    errs.append((need, st, posmap[i], msg) if raw else msg)
            if kj == 'mfma':
                D, C, AB = xj
                if k == 'mfma':
                    Dm, Cm, ABm = x
                    if ABm & D: err(8, 'mfma D -> mfma A/B')
                    if (Cm & D) and Cm != D: err(6, 'mfma D -> partial C')
                    if (Dm & D) and not (Cm == D and Dm == D): err(8, 'mfma D WAW')
                elif k in VALUISH or k in ('vstore', 'dsw', 'vload', 'dsr'):
                    if (v_r | v_w) & D: err(8, 'mfma D -> valu/mem')
                if k in VALUISH and (v_w & C): err(3, 'mfma C WAR')
            if kj in VALUISH:
                vwj = isv(wj)
                if k == 'mfma' and (vwj & r): err(2, 'valu -> mfma operand')
                if k == 'perm' and (vwj & r): err(2, 'valu -> permlane')
                if k == 'rdlane' and (vwj & v_r): err(1, 'valu -> readlane')
                if kj == 'trans' and k in ('valu', 'perm', 'valu_sw', 'rdlane', 'trans', 'vstore', 'dsw', 'dsr', 'vload') and (vwj & v_r): err(1, 'trans -> use')
                if '_dpp' in t.split()[0] and (vwj & regs(split_ops(t)[1][1])): err(2, 'valu -> dpp')
                if kj in ('valu_sw', 'rdlane'):
                    swj = {a for a in wj if a[0] == 's'}
                    if k in ('vload', 'vstore') and (swj & s_r): err(5, 'valu sgpr -> vmem')
                    if k in VALUISH and (swj & s_r): err(2, 'valu sgpr -> valu const')
                    if k == 'salu' and (swj & s_r): err(1, 'valu sgpr -> salu')
            if kj == 'vstore':
                data, op = xj
                if ('x4' in op or 'x3' in op) and (k in VALUISH) and (v_w & data): err(2, 'store data WAR valu')
                if ('x4' in op or 'x3' in op) and (k in ('vload', 'dsr', 'mfma')) and (v_w & data): err(1, 'store data WAR')
    if verbose and not raw:
        for e in errs[:20]: print('HAZARD', e)
    return errs

def fix_hazards(texts, verbose=True):
    texts = list(texts)
    nfix = 0
    errs = check_hazards(texts, verbose=False, raw=True)
    while errs:
        bypos = {}
        for (need, have, pos, msg) in errs:
            if pos not in bypos or need - have > bypos[pos][0]: bypos[pos] = (need - have, msg)
        pos = min(bypos)
        gap, msg = bypos[pos]
        texts.insert(pos, f's_nop {gap - 1}')
        nfix += 1
        if verbose: print('  fixed hazard with s_nop', gap - 1, '::', msg.replace('\n', ' | '))
        errs = check_hazards(texts, verbose=False, raw=True)
    return texts
```

```python
import re
from sched4 import split_ops, regs
import gen_v5 as G4

def rlist(tok):
    m = re.match(r'([vas])\[(\d+):(\d+)\]$', tok)
    if m: return [(m.group(1), i) for i in range(int(m.group(2)), int(m.group(3)) + 1)]
    m = re.match(r'([vas])(\d+)$', tok)
    if m: return [(m.group(1), int(m.group(2)))]
    return None

class Sym:
    def __init__(self): self.tab = {}
    def __call__(self, *t):
        if t not in self.tab: self.tab[t] = len(self.tab) + 1
        return self.tab[t]

def verify(lines, g, path='k'):
    S = Sym(); R = {}; dsq = []; vmq = []; pend = set(); nbar = 0; stores = {}; unk = [0]
    stage_of = {b: k for k in range(4) for b in G4.STAGES[k]}
    labels = {l[:-1]: n for n, l in enumerate(lines) if l.endswith(':')}
    errs = []
    def val(r):
        if r in pend: errs.append(f'line {pc}: read of pending {r}: {l}')
        if r not in R:
            unk[0] += 1; R[r] = S('undef', r, unk[0])
        return R[r]
    def wr(r, v):
        if r in pend: errs.append(f'line {pc}: write of pending {r}: {l}')
        R[r] = v
    pc = 0
    while pc < len(lines):
        l = lines[pc]
        if l.endswith(':'): pc += 1; continue
        op, ops = split_ops(l)
        if op == 's_branch': pc = labels[ops[0]]; continue
        if op == 's_cbranch_scc1' and path == 'v' and ops[0].endswith('_v'): pc = labels[ops[0]]; continue
        if op.startswith('s_cbranch') or op in ('s_nop', 's_barrier', 's_setprio') or op.startswith('s_mem'):
            if op == 's_barrier':
                nbar += 1
            pc += 1; continue
        if op == 's_waitcnt':
            for m in re.finditer(r'(vmcnt|lgkmcnt)\((\d+)\)', l):
                q = vmq if m.group(1) == 'vmcnt' else dsq
                while len(q) > int(m.group(2)):
                    for r in q.pop(0): pend.discard(r)
            pc += 1; continue
        mo = re.search(r'offset:(\d+)', l); off = int(mo.group(1)) if mo else 0
        if op == 'buffer_load_dwordx4':
            d = rlist(ops[0]); srd = ops[2]; so = ops[3].split()[0]
            for i, r in enumerate(d):
                if r in pend: errs.append(f'line {pc}: load over pending {r}')
                R[r] = S('gl', srd, so, off, i); pend.add(r)
            vmq.append(d)
        elif op == 'global_load_dword':
            d = rlist(ops[0]); R[d[0]] = S('pf'); pend.add(d[0]); vmq.append(d)
        elif op == 'buffer_store_dwordx4':
            d = rlist(ops[0]); so = ops[3].split()[0]
            stores[(so, off)] = [val(r) for r in d]
            vmq.append([])
        elif op == 'ds_read_b128':
            d = rlist(ops[0]); a = ops[1].split()[0]
            if a in (f'v{G4.V_K}', f'v{G4.V_V0}'):
                blk = ('K' if a == f'v{G4.V_K}' else 'V', off // 8192)
                if nbar <= stage_of[blk]: errs.append(f'line {pc}: LDS read of {blk} before barrier: {l}')
            for i, r in enumerate(d):
                if r in pend: errs.append(f'line {pc}: ds load over pending {r}')
                R[r] = S('lds', a, off, i); pend.add(r)
            dsq.append(d)
        elif op == 'ds_bpermute_b32':
            d = rlist(ops[0]); src = [val(rlist(o.split()[0])[0]) for o in ops[1:]]
            v = S('bperm', *src)
            if d[0] in pend: errs.append(f'line {pc}: bpermute over pending')
            R[d[0]] = v; pend.add(d[0]); dsq.append(d)
        elif op.startswith('ds_write'):
            for o in ops[1:]:
                for r in (rlist(o.split()[0]) or []): val(r)
            dsq.append([])
        elif op.startswith('v_mfma'):
            d, a, b = rlist(ops[0]), rlist(ops[1]), rlist(ops[2]); c = rlist(ops[3])
            av = tuple(val(r) for r in a); bv = tuple(val(r) for r in b)
            cv = [val(r) for r in c] if c else [0]*4
            for i, r in enumerate(d): wr(r, S('mf', av, bv, cv[i], i))
        elif op.startswith('v_'):
            d = rlist(ops[0])
            src = []
            mods = ''
            if '_dpp' in op:
                last = ops[-1].split(None, 1); ops = ops[:-1] + [last[0]]; mods = last[1]
            for o in ops[1:]:
                rl = rlist(o)
                src.append(val(rl[0]) if rl and rl[0][0] in 'va' else o)
            nm = op + mods
            if op in ('v_accvgpr_read_b32', 'v_accvgpr_write_b32', 'v_mov_b32') and not isinstance(src[0], str): v = src[0]
            else: v = S(nm, *src)
            if d:
                for r in d: wr(r, v)
        pc += 1
    one = S('v_mov_b32', '0x3f803f80'); ONES = (one,)*4
    st = g.st
    def lds(a, off): return tuple(S('lds', f'v{a}', off, i) for i in range(4))
    nbad = 0
    g.bpval = R[('v', G4.V_BP)]
    for tau in range(16):
        so = '0' if tau == 0 else f's{G4.S_TOFF+tau}'
        Q = [tuple(S('gl', f's[{G4.SQ}:{G4.SQ+3}]', so, 64*j, i) for i in range(4)) for j in range(4)]
        O = [[0]*4 for _ in range(8)]; L = [0]*4
        for gg in range(st[tau], st[tau] + 8):
            kb = gg % 8
            P = []
            for s in range(2):
                acc = [0]*4
                for j in range(4):
                    A = lds(G4.V_K, kb*8192 + (4*s+j)*1024)
                    acc = [S('mf', A, Q[j], acc[r], r) for r in range(4)]
                ex = [S('v_exp_f32', x) for x in acc]
                P += [S('v_cvt_pk_bf16_f32', ex[0], ex[1]), S('v_cvt_pk_bf16_f32', ex[2], ex[3])]
            P = tuple(P)
            L = [S('mf', ONES, P, L[r], r) for r in range(4)]
            for t in range(8):
                A = lds(G4.V_V0, kb*8192 + t*1024)
                O[t] = [S('mf', P, A, O[t][r], r) for r in range(4)]
        li = S('bperm', g.bpval, S('v_rcp_f32', L[0]))
        for r in range(4):
            exp = []
            mm = lambda t: S('v_mul_f32_dpp' + f'row_newbcast:{r} row_mask:0xf bank_mask:0xf', li, O[t][r])
            for q in range(4):
                exp.append(S('v_cvt_pk_bf16_f32', mm(2*q), mm(2*q+1)))
            got = stores.get((so, 256*r))
            if got != exp:
                nbad += 1
                if 'nost' not in g.diag: errs.append(f'store tile {tau} piece {r} mismatch')
    return errs
```

```python
import sys
sys.path.insert(0, 'gen')
from common import *
import sched4 as sched
from sched4 import I, insert_waits, check_hazards, fix_hazards

C_SCALE = (128 ** -0.5) * 1.4426950408889634
def ar(b, n=1): return f'a{b}' if n == 1 else f'a[{b}:{b+n-1}]'

SQ, SO = 12, 16
SKB, SVB = 20, 22
SB = 24
S_OFF = 28
S_W, S_C, S_SEL0, S_SEL1, S_CODE = 40, 41, 42, 43, 44
S_T0, S_T1, S_T2 = 45, 46, 47
S_LO, S_RNG, S_TILE = 48, 49, 50
S_TOFF = 52
S_STAMP = 70
O_ = 0
S_ = 160
P_ = 224
V_K, V_V0, V_BP, V_Q, V_BAD = 240, 241, 242, 243, 244
V_LINV = [245, 246]
V_TMP = 247
V_ST = 248
V_GK, V_GV, V_G, V_AD0 = 249, 250, 251, 252
V_CT = 216
V_CM = 254
AQ = 0
ARING = 128
AL = 192
AONE = 212
FLAGS = 0x20000
LDS_BYTES = 0x20000 + 256
L_LO = f2u(2.0 ** -30)
L_HI = f2u(2.0 ** 40)
V_THR = 0x6780
STAGES = [[('K', 0), ('K', 1), ('V', 0), ('K', 2)],
          [('V', 1), ('K', 3), ('V', 2), ('K', 4)],
          [('V', 3), ('K', 5), ('V', 4), ('K', 6)],
          [('V', 5), ('K', 7), ('V', 6), ('V', 7)]]

class Branch:
    def __init__(self, name, pre, k, v):
        self.name = name; self.pre = pre; self.k = k; self.v = v

def waits(items, dq, vq):
    out = []; run = []
    def flush():
        nonlocal run, dq, vq
        if run:
            r, dq, vq = insert_waits(run, dq, vq)
            out.extend(x.text for x in r)
            run = []
    for it in items:
        if isinstance(it, Branch):
            flush()
            out.extend(it.pre)
            out.append(f's_cbranch_scc1 {it.name}_v')
            seen0 = set(sched.SEEN)
            rk, dk, vk = insert_waits(it.k, dq, vq)
            rv, dv, vv = insert_waits(it.v, dq, vq)
            assert dk == [] and dv == [], (dk, dv)
            vq = vk if len(vk) >= len(vv) else vv
            sh = vv if vq is vk else vk
            assert vq[len(vq)-len(sh):] == sh
            dq = []
            out.extend(x.text for x in rk)
            out.append(f's_branch {it.name}_e')
            out.append(f'{it.name}_v:')
            out.extend(x.text for x in rv)
            out.append(f'{it.name}_e:')
        else:
            run.append(it)
    flush()
    return out, dq, vq

class T:
    __slots__ = ('it', 'cost', 'e', 'dl', 'deps', 'slot', 'kind', 'seq')
    n = 0
    def __init__(self, it, cost, e, dl, deps=(), kind=''):
        self.it = it; self.cost = cost; self.e = e; self.dl = dl; self.deps = list(deps); self.slot = None
        self.kind = kind; T.n += 1; self.seq = T.n
    def ready(self, x):
        if self.e > x: return False
        for (d, lag) in self.deps:
            if d.slot is None or d.slot + lag > x: return False
        return True

def mk(o):
    return lambda s: [o.append(I(l.strip())) for l in s.strip().split('\n') if l.strip()]

class Gen:
    def __init__(self, starts=None, R=8, D=7, W=4, NQ=8, PQ=8, win=12, cil=4, stflags='nt', qflags=None, kvflags='',
                 stamps=False, force_slow=False, budget=8, sslots=None, diag='', lfirst=True, hz=4, soft=165, sfrac=(0.36, 0.57, 0.79, 1.0), spread=True, qgap=4, qoff=24, stst=None, cpf=0):
        self.st = starts or [2*t for t in range(16)]
        self.R = R; self.D = D; self.W = W; self.NQ = NQ; self.PQ = PQ; self.win = win; self.cil = cil
        self.stf = stflags; self.kv = kvflags
        self.qf = qflags or (['', 'nt'] + ['nt']*14)
        self.stamps = stamps; self.force_slow = force_slow; self.budget = budget
        self.sslots = sslots or {}
        self.diag = diag; self.lfirst = lfirst; self.hz = hz; self.soft = soft; self.sfrac = sfrac; self.spread = spread; self.qgap = qgap; self.qoff = qoff; self.stst = stst; self.cpf = cpf
        assert D <= R - 1 and D <= 15
        self.nstamp = 0

    def stamp(self, idx):
        if not self.stamps: return []
        r = S_STAMP + 2*idx
        assert r + 1 <= 101
        return [I(f'{"s_memtime" if self.stamps == "cyc" else "s_memrealtime"} s[{r}:{r+1}]')]
    def Oreg(self, tau, t=0): return O_ + 32*(tau % 5) + 4*t
    def Sreg(self, g, tau, s=0): return S_ + 32*(g % 2) + 8*(tau % 4) + 4*s
    def Qreg(self, tau, j): return AQ + 16*(tau % self.NQ) + 4*j
    def Lreg(self, tau): return AL + 4*(tau % 5)
    def qload(self, tau, j):
        if 'noq' in self.diag and tau > 3: return I('s_nop 0')
        so = '0' if tau == 0 else f's{S_TOFF+tau}'
        return I(f'buffer_load_dwordx4 {ar(self.Qreg(tau, j), 4)}, v{V_Q}, s[{SQ}:{SQ+3}], {so} offen offset:{64*j} {self.qf[tau]}'.rstrip(), vm=('Q', tau, j))
    def raw(self, k): return O_ + 32*(k + 1)
    def blksetup(self, k):
        o = []; A = mk(o)
        A(f'''
        s_bfe_u32 s{S_T0}, s{S_CODE}, {hex((3 << 16) | (4*k))}
        s_lshl_b32 s{S_OFF}, s{S_T0}, 13
        s_bitcmp1_b32 s{S_CODE}, {4*k+3}
        s_cselect_b64 s[{SB}:{SB+1}], s[{SVB}:{SVB+1}], s[{SKB}:{SKB+1}]
        s_cselect_b32 s{S_T0}, 256, 64
        s_cselect_b64 vcc, -1, 0
        s_add_u32 s{S_OFF+1}, s{S_OFF}, s{S_T0}
        v_cndmask_b32 v{V_G}, v{V_GK}, v{V_GV}, vcc
        s_add_u32 s{S_OFF+2}, s{S_OFF+1}, s{S_T0}
        s_add_u32 s{S_OFF+3}, s{S_OFF+2}, s{S_T0}
        ''')
        return o
    def blkload(self, k, i):
        return I(f'buffer_load_dwordx4 {vr(self.raw(k)+4*i, 4)}, v{V_G}, s[{SB}:{SB+3}], s{S_OFF + i % 4} offen offset:{1024*(i//4)} {self.kv}'.rstrip(), vm=('B', k, i))

    def build_stream(self, order):
        self.stream = []; self.spos = {}
        for e in order:
            if e[0] == 'B':
                for i in range(8):
                    g = (self.blksetup(e[1]) if i == 0 else []) + [self.blkload(e[1], i)]
                    self.stream.append(g); self.spos[('B', e[1], i)] = len(self.stream) - 1
            else:
                for j in range(4):
                    self.stream.append([self.qload(e[1], j)]); self.spos[('Q', e[1], j)] = len(self.stream) - 1
        self.sissued = 0
    def ensure(self, p):
        out = []
        while self.sissued <= min(p, len(self.stream) - 1):
            out.append(self.stream[self.sissued]); self.sissued += 1
        return out

    def common(self):
        o = []; A = mk(o)
        tab = 0
        for w in range(4):
            c = 0
            for k in range(4):
                ty, idx = STAGES[k][w]
                c |= ((8 if ty == 'V' else 0) | idx) << (4*k)
            tab |= c << (16*w)
        A(f'''
        s_load_dwordx4 s[4:7], s[0:1], 0
        s_load_dwordx4 s[8:11], s[0:1], 16
        ''')
        o += self.stamp(0)
        if self.stamps: A('s_memtime s[32:33]')
        A(f'''
        v_lshrrev_b32 v1, 6, v0
        v_and_b32 v2, 63, v0
        v_readfirstlane_b32 s{S_W}, v1
        v_and_b32 v3, 15, v2
        v_lshrrev_b32 v4, 4, v2
        v_lshlrev_b32 v5, 4, v4
        v_lshl_add_u32 v{V_Q}, v3, 8, v5
        v_lshrrev_b32 v6, 2, v3
        v_and_b32 v7, 3, v3
        v_lshl_add_u32 v{V_GK}, v6, 11, v5
        v_lshl_add_u32 v{V_GK}, v7, 8, v{V_GK}
        v_lshlrev_b32 v{V_GV}, 4, v3
        v_lshl_add_u32 v{V_GV}, v4, 11, v{V_GV}
        s_lshl_b32 s{S_T0}, s{S_W}, 4
        s_mov_b32 s{S_T1}, {hex(tab & 0xffffffff)}
        s_mov_b32 s{S_T2}, {hex(tab >> 32)}
        s_lshr_b64 s[{S_T1}:{S_T2}], s[{S_T1}:{S_T2}], s{S_T0}
        s_and_b32 s{S_CODE}, s{S_T1}, 0xffff
        s_lshl_b32 s3, s2, 16
        s_mov_b32 s{SB+2}, 0x10000
        s_mov_b32 s{SB+3}, 0x20000
        s_lshl_b32 s{S_T1}, s2, 18
        s_lshl_b32 s{S_T2}, s{S_W}, 16
        s_add_u32 s{S_T2}, s{S_T2}, s{S_T1}
        s_waitcnt lgkmcnt(0)
        s_add_u32 s{SKB}, s6, s3
        s_addc_u32 s{SKB+1}, s7, 0
        s_and_b32 s{SKB+1}, s{SKB+1}, 0xffff
        s_add_u32 s{SVB}, s8, s3
        s_addc_u32 s{SVB+1}, s9, 0
        s_and_b32 s{SVB+1}, s{SVB+1}, 0xffff
        ''')
        self.pf = []
        if self.cpf:
            Pf = mk(self.pf)
            Pf(f'''
            s_getpc_b64 s[36:37]
            s_lshr_b32 s38, s2, 3
            s_and_b32 s38, s38, 31
            s_lshl_b32 s38, s38, 11
            s_lshl_b32 s39, s{S_W}, 9
            s_add_u32 s38, s38, s39
            s_add_u32 s36, s36, s38
            s_addc_u32 s37, s37, 0
            v_lshlrev_b32 v10, 7, v2
            v_mov_b32 v11, s37
            v_add_co_u32 v10, vcc, s36, v10
            v_addc_co_u32 v11, vcc, 0, v11, vcc
            v_cmp_gt_u32 vcc, 4, v2
            s_and_saveexec_b64 s[38:39], vcc
            ''')
            self.pf.append(I('global_load_dword v12, v[10:11], off', vm=('PF',)))
            Pf('s_mov_b64 exec, s[38:39]')
        self.qsetup = []
        B = mk(self.qsetup)
        B(f'''
        s_add_u32 s{SQ}, s4, s{S_T2}
        s_addc_u32 s{SQ+1}, s5, 0
        s_and_b32 s{SQ+1}, s{SQ+1}, 0xffff
        s_mov_b32 s{SQ+2}, 0x10000
        s_mov_b32 s{SQ+3}, 0x20000
        s_add_u32 s{SO}, s10, s{S_T2}
        s_addc_u32 s{SO+1}, s11, 0
        s_and_b32 s{SO+1}, s{SO+1}, 0xffff
        s_mov_b32 s{SO+2}, 0x10000
        s_mov_b32 s{SO+3}, 0x20000
        ''')
        for t in range(1, 16): B(f's_mov_b32 s{S_TOFF+t}, {t*4096}')
        return o

    def setup_rest(self):
        o = []; A = mk(o)
        A(f'''
        v_lshlrev_b32 v{V_K}, 4, v2
        v_add_u32 v{V_V0}, 0x10000, v{V_K}
        v_lshlrev_b32 v{V_ST}, 4, v3
        v_lshl_add_u32 v{V_ST}, v4, 10, v{V_ST}
        v_lshl_add_u32 v8, v4, 2, v3
        v_and_b32 v8, 15, v8
        v_lshl_add_u32 v8, v4, 4, v8
        v_lshlrev_b32 v{V_BP}, 2, v8
        v_mov_b32 v{V_BAD}, 0
        v_mov_b32 v9, 0x3f803f80
        s_mov_b32 s{S_C}, {hex(f2u(C_SCALE))}
        s_mov_b32 s{S_SEL0}, 0x05040100
        s_mov_b32 s{S_SEL1}, 0x07060302
        s_mov_b32 s{S_LO}, {hex(L_LO)}
        s_mov_b32 s{S_RNG}, {hex(L_HI - L_LO)}
        v_accvgpr_write_b32 a{AONE}, v9
        v_accvgpr_write_b32 a{AONE+1}, v9
        v_accvgpr_write_b32 a{AONE+2}, v9
        v_accvgpr_write_b32 a{AONE+3}, v9
        ''')
        return o

    def conv(self, k, extra):
        R = self.raw(k); name = f'L_c{k}'
        pre = [f's_bfe_u32 s{S_T1}, s{S_CODE}, {hex((3 << 16) | (4*k))}',
               f's_lshl_b32 s{S_T1}, s{S_T1}, 13',
               f's_bitcmp1_b32 s{S_CODE}, {4*k+3}']
        def splice(pieces):
            out = []
            n = len(pieces); m = len(extra)
            for i, p in enumerate(pieces):
                out += p
                for q in range(m):
                    if (q * n) // max(m, 1) == i: out += extra[q]
            return out
        kp = []
        for i in range(8):
            p = []
            if i == 0: p.append(I(f'v_add_u32 v{V_AD0}, s{S_T1}, v{V_K}'))
            for w in range(4):
                r = R + 4*i + w
                t0, t1 = V_CT + 2*(w % 2), V_CT + 1 + 2*(w % 2)
                p.append(I(f'v_lshlrev_b32 v{t0}, 16, v{r}', nvm=[('B', k, i)]))
                p.append(I(f'v_and_b32 v{t1}, 0xffff0000, v{r}'))
                p.append(I(f'v_mul_f32 v{t0}, s{S_C}, v{t0}'))
                p.append(I(f'v_mul_f32 v{t1}, s{S_C}, v{t1}'))
                p.append(I(f'v_cvt_pk_bf16_f32 v{r}, v{t0}, v{t1}'))
            p.append(I(f'ds_write_b128 v{V_AD0}, {vr(R+4*i,4)} offset:{i*1024}', ds=('CW', k, i)))
            kp.append(p)
        kk = splice(kp) + [I('s_nop 0', nds=[('CW', k, 7)])]
        vp = []
        for e in range(8):
            p = []
            if e == 0:
                p.append(I(f'v_add_u32 v{V_AD0}, s{S_T1}, v{V_V0}'))
            dst = V_CT + 4*(e % 2)
            sel = S_SEL0 if e % 2 == 0 else S_SEL1
            for n in range(4):
                r0 = R + 4*(2*n) + e//2
                r1 = R + 4*(2*n+1) + e//2
                p.append(I(f'v_perm_b32 v{dst+n}, v{r1}, v{r0}, s{sel}', nvm=[('B', k, 7)] if (e == 0 and n == 0) else ()))
            p.append(I(f'ds_write_b128 v{V_AD0}, {vr(dst,4)} offset:{e*1024}', ds=('CW', k, e)))
            m0, m1 = V_CM, V_CM + 1
            a, b, c, d = [R + 4*e + x for x in range(4)]
            if e == 0:
                p.append(I(f'v_pk_maximum3_f16 v{m0}, v{a}, v{b}, v{c}'))
                p.append(I(f'v_pk_minimum3_f16 v{m1}, v{a}, v{b}, v{c}'))
                p.append(I(f'v_pk_maximum3_f16 v{m0}, v{m0}, v{d}, v{d}'))
                p.append(I(f'v_pk_minimum3_f16 v{m1}, v{m1}, v{d}, v{d}'))
            else:
                p.append(I(f'v_pk_maximum3_f16 v{m0}, v{m0}, v{a}, v{b}'))
                p.append(I(f'v_pk_minimum3_f16 v{m1}, v{m1}, v{a}, v{b}'))
                p.append(I(f'v_pk_maximum3_f16 v{m0}, v{m0}, v{c}, v{d}'))
                p.append(I(f'v_pk_minimum3_f16 v{m1}, v{m1}, v{c}, v{d}'))
            if e == 7:
                p.append(I(f'v_and_b32 v{m0}, 0x7fff7fff, v{m0}'))
                p.append(I(f'v_and_b32 v{m1}, 0x7fff7fff, v{m1}'))
                p.append(I(f'v_pk_max_u16 v{m0}, v{m0}, v{m1}'))
                p.append(I(f'v_pk_max_u16 v{V_BAD}, v{V_BAD}, v{m0}'))
            vp.append(p)
        vv = splice(vp) + [I('s_nop 0', nds=[('CW', k, 7)])]
        return Branch(name, pre, kk, vv)

    def flagwrite(self):
        o = []; A = mk(o)
        t = V_CT
        A(f'''
        v_lshrrev_b32 v{t}, 16, v{V_BAD}
        v_and_b32 v{V_BAD}, 0xffff, v{V_BAD}
        v_max_u32 v{V_BAD}, v{V_BAD}, v{t}
        v_cmp_le_u32 vcc, {hex(V_THR)}, v{V_BAD}
        s_lshl_b32 s{S_T0}, s{S_W}, 2
        s_add_u32 s{S_T0}, s{S_T0}, {hex(FLAGS)}
        s_cmp_lg_u64 vcc, 0
        s_cselect_b32 s{S_T1}, -1, {-1 if self.force_slow else 0}
        v_mov_b32 v{t}, s{S_T0}
        v_mov_b32 v{t+1}, s{S_T1}
        ''')
        o.append(I(f'ds_write_b32 v{t}, v{t+1}', ds=('FW',)))
        o.append(I('s_nop 0', nds=[('FW',)]))
        return o
    def flagread(self):
        o = []; A = mk(o)
        t = V_CT
        A(f'v_mov_b32 v{t+4}, {hex(FLAGS)}')
        o.append(I(f'ds_read_b128 {vr(t,4)}, v{t+4}', ds=('FR',)))
        o.append(I(f'v_or3_b32 v{V_BAD}, v{t}, v{t+1}, v{t+2}', nds=[('FR',)]))
        A(f'v_or_b32 v{V_BAD}, v{V_BAD}, v{t+3}')
        return o

    def program(self):
        st = self.st; R = self.R; D = self.D; W = self.W
        G = st[15] + 8
        active = lambda g: [t for t in range(16) if st[t] <= g <= st[t] + 7]
        for g in range(G): assert 1 <= len(active(g)) <= 4 and len({t % 4 for t in active(g)}) == len(active(g))
        phases = [('QK', 0)]
        for g in range(G):
            if g + 1 < G: phases.append(('QK', g + 1))
            phases.append(('PV', g))
        def Pslot(tau, g):
            if g == G - 1:
                act = {t % 4 for t in active(g)} | {t % 4 for t in active(g - 1)}
                free = [s for s in range(4) if s not in act]
                if free: return free[0]
            return tau % 4
        Preg = lambda tau, g: P_ + 4*Pslot(tau, g)
        mf = []
        first = {}; last = {}; fr_first = {}; fr_last = {}; fr_read = {}
        srdy = {}; ofin = {}; ofirst = {}; lfin = {}; pfirst = {}; plast = {}; qlast = {}; qfirst = {}
        nf = 0
        for ph in phases:
            kind, g = ph
            first[ph] = len(mf)
            act = active(g)
            if kind == 'QK':
                for s in range(2):
                    for j in range(4):
                        f = nf; nf += 1
                        fr_read[f] = (V_K, (g % 8)*8192 + (4*s + j)*1024, ('K', g % 8))
                        fr_first[f] = len(mf)
                        for tau in act:
                            d = vr(self.Sreg(g, tau, s), 4)
                            mf.append(dict(text=f'v_mfma_f32_16x16x32_bf16 {d}, RG, {ar(self.Qreg(tau, j), 4)}, {"0" if j == 0 else d}', f=f))
                            if j == 3: srdy[(tau, g, s)] = len(mf) - 1
                            qlast[tau] = len(mf) - 1
                            if tau not in qfirst: qfirst[tau] = first[ph]
                        fr_last[f] = len(mf) - 1
            else:
                def lm():
                    for tau in act:
                        L = ar(self.Lreg(tau), 4)
                        mf.append(dict(text=f'v_mfma_f32_16x16x32_bf16 {L}, {ar(AONE,4)}, {vr(Preg(tau, g),4)}, {"0" if g == st[tau] else L}', f=None))
                        pfirst.setdefault((tau, g), len(mf) - 1); plast[(tau, g)] = len(mf) - 1
                        if g == st[tau] + 7: lfin[tau] = len(mf) - 1
                if self.lfirst: lm()
                for t in range(8):
                    f = nf; nf += 1
                    fr_read[f] = (V_V0, (g % 8)*8192 + t*1024, ('V', g % 8))
                    fr_first[f] = len(mf)
                    for tau in act:
                        d = vr(self.Oreg(tau, t), 4)
                        mf.append(dict(text=f'v_mfma_f32_16x16x32_bf16 {d}, {vr(Preg(tau, g),4)}, RG, {"0" if g == st[tau] else d}', f=f))
                        pfirst.setdefault((tau, g), len(mf) - 1); plast[(tau, g)] = len(mf) - 1
                        if g == st[tau] + 7: ofin[(tau, t)] = len(mf) - 1
                        if g == st[tau]: ofirst[(tau, t)] = len(mf) - 1
                    fr_last[f] = len(mf) - 1
                if not self.lfirst: lm()
            last[ph] = len(mf) - 1
        NS = len(mf); EXTRA = 80
        self.NS = NS; self.first = first
        stage_of = {b: k for k in range(4) for b in STAGES[k]}
        bar_phase = {}
        for ph in phases:
            b = ('K' if ph[0] == 'QK' else 'V', ph[1] % 8)
            k = stage_of[b]
            if k not in bar_phase: bar_phase[k] = ph
        assert sorted(bar_phase) == [0, 1, 2, 3]
        for k in range(3): assert first[bar_phase[k]] < first[bar_phase[k+1]]
        bar_slot = {k: first[bar_phase[k]] for k in range(4)}
        assert all(first[('QK', g)] >= bar_slot[3] for g in range(G) for t in active(g) if t % 4 == 3 and g % 2 == 1)
        for k in range(4): assert ofirst[(k + 1, 0)] >= bar_slot[k]
        need = []
        for k in range(4): need.append((bar_slot[k], 0, ('B', k)))
        for tau in range(self.NQ): need.append((qfirst[tau], 1, ('Q', tau)))
        need.sort()
        self.build_stream([e for (_, _, e) in need])
        pre = [[] for _ in range(NS + EXTRA)]
        post = [[] for _ in range(NS + EXTRA)]
        reserve = [0] * (NS + EXTRA)
        drain = set()
        prog0 = []
        p0 = self.spos[('B', 0, 7)]
        if self.cpf == 1: prog0 += self.pf
        for g in self.ensure(p0): prog0 += g
        if self.cpf == 2: prog0 += self.pf
        prog0 += self.qsetup
        for g in self.ensure(p0 + self.win): prog0 += g
        prog0 += self.stamp(1)
        prog0 += self.setup_rest()
        stream_in = set()
        for k in range(4):
            x = bar_slot[k]
            dst = prog0 if k == 0 else pre[x]
            e = self.spos[('B', k, 7)]
            for g in self.ensure(e + self.win): dst += g
            extra = self.ensure(e + self.win + self.cil)
            dst.append(self.conv(k, extra))
            if k == 3: dst += self.flagwrite()
            dst += self.stamp(2 + 2*k)
            dst.append(I('s_barrier'))
            dst += self.stamp(3 + 2*k)
            if k == 3: dst += self.flagread()
            if k > 0: drain.add(x - 1)
        for tau in range(self.NQ):
            x = qfirst[tau]
            if x <= bar_slot[3]:
                pass
        issued_q = {tau for tau in range(self.NQ) if self.spos[('Q', tau, 3)] < self.sissued}
        partial = [tau for tau in range(self.NQ) if tau not in issued_q and self.spos[('Q', tau, 0)] < self.sissued]
        for tau in partial:
            for g in self.ensure(self.spos[('Q', tau, 3)]): pre[bar_slot[3]] += g
            issued_q.add(tau)
        tasks = []; exps = []
        rdt = {}
        for f in range(nf):
            areg, off, blk = fr_read[f]
            it = I(f'ds_read_b128 {ar(ARING + 4*(f % R), 4)}, v{areg} offset:{off}', ds=('F', f))
            bs = bar_slot[stage_of[blk]] if first_use(fr_read, f, blk) or True else 0
            bs = bar_slot[stage_of[blk]]
            src = f - D
            if src < 0 or fr_first[src] < bs:
                x = bs if fr_first[f] >= bs else None
                assert x is not None
                if src >= 0 and f - R >= 0: assert fr_last[f - R] < bs or True
                if f - R >= 0 and fr_last[f - R] >= bs:
                    e = fr_last[f - R]
                    t = T(it, 4, e, e + 1, kind='ds'); tasks.append(t); rdt[f] = t
                else:
                    pre[bs].append(it)
            else:
                e = fr_first[src]
                if f - R >= 0: e = max(e, fr_last[f - R])
                dl = max(fr_last[src], e)
                t = T(it, 4, e, dl, kind='ds'); tasks.append(t); rdt[f] = t
        for f in range(nf):
            m = mf[fr_first[f]]
            m['nds'] = [('F', f)]
            if f % W == 0:
                m['also'] = [('F', f + i) for i in range(1, W) if f + i < nf]
                if fr_first[f] > 0: reserve[fr_first[f] - 1] += 4
        cvts = {}
        order = sorted(srdy, key=lambda k: (srdy[k], k))
        for (tau, g, s) in order:
            S = self.Sreg(g, tau, s); P = Preg(tau, g)
            dlc = pfirst[(tau, g)] - 2
            prev = [plast[(t2, g2)] for (t2, g2) in plast if Pslot(t2, g2) == Pslot(tau, g) and plast[(t2, g2)] < pfirst[(tau, g)]]
            ec = max(prev) if prev else 0
            ex = []
            for r in range(4):
                t = T(I(f'v_exp_f32 v{S+r}, v{S+r}'), 8, srdy[(tau, g, s)] + self.hz, dlc - 1, kind='exp')
                exps.append(t); ex.append(t)
            for c in range(2):
                t = T(I(f'v_cvt_pk_bf16_f32 v{P+2*s+c}, v{S+2*c}, v{S+2*c+1}'), 4, ec, dlc, deps=[(ex[2*c], 1), (ex[2*c+1], 1)], kind='cvt')
                tasks.append(t)
        self.epi = {}
        CV = [(0,0),(1,0),(0,1),(2,0),(3,0),(0,2),(0,3),(1,1),(1,2),(1,3),(2,1),(2,2),(3,1),(2,3),(3,2),(3,3)]
        CVG = [0]*7 + [1]*3 + [2]*4 + [3]*2
        for tau in range(16):
            LI = V_LINV[tau % 2]
            soft = self.soft
            x = lfin[tau] + self.hz
            a = T(I(f'v_accvgpr_read_b32 v{LI}, a{self.Lreg(tau)}'), 4, x, x + 6, kind='ep')
            b = T(I(f'v_subrev_u32 v{V_TMP}, s{S_LO}, v{LI}'), 4, x, x + 8, deps=[(a, 1)], kind='ep')
            c = T(I(f'v_rcp_f32 v{LI}, v{LI}'), 8, x, x + 10, deps=[(b, 0)], kind='ep')
            d = T(I(f'v_max_u32 v{V_BAD}, v{V_BAD}, v{V_TMP}'), 4, x, x + 12, deps=[(b, 1)], kind='ep')
            bp = T(I(f'ds_bpermute_b32 v{LI}, v{V_BP}, v{LI}', ds=('BP', tau)), 4, x, x + 14, deps=[(c, 1)], kind='ep')
            tasks += [a, b, c, d, bp]
            if tau >= 2:
                a.deps += [(m, 0) for m in self.epi[tau - 2]]
            O = self.Oreg(tau)
            hard = lambda t: (ofirst[(tau + 5, t)] - 1) if tau + 5 < 16 else NS + EXTRA - 1
            hmin = min(hard(t) for t in range(8))
            e_all = ofin[(tau, 7)] + self.hz
            soft_ = min(soft, hmin - e_all)
            tgt = [e_all + int(soft_ * fr) for fr in self.sfrac]
            need = {}
            for n, (r, q) in enumerate(CV): need[(r, q)] = CVG[n]
            mul = {}
            for t in range(8):
                for r in range(4):
                    gidx = need[(r, t // 2)]
                    dl = min(hmin - 8, tgt[gidx] - 6)
                    m = T(I(f'v_mul_f32_dpp v{O+4*t+r}, v{LI}, v{O+4*t+r} row_newbcast:{r} row_mask:0xf bank_mask:0xf', nds=[('BP', tau)]),
                          4, ofin[(tau, t)] + self.hz, dl, deps=[(bp, 8)], kind='ep')
                    tasks.append(m); mul[(t, r)] = m
            prevc = None; cv = {}
            for n, (r, q) in enumerate(CV):
                deps = [(mul[(2*q, r)], 1), (mul[(2*q+1, r)], 1)] + ([(prevc, 0)] if prevc else [])
                dl = min(hmin - 4, tgt[CVG[n]] - 2)
                t = T(I(f'v_cvt_pk_bf16_f32 v{O+4*r+q}, v{O+4*(2*q)+r}, v{O+4*(2*q+1)+r}'), 4, e_all, dl, deps=deps, kind='ep')
                tasks.append(t); prevc = t; cv[(r, q)] = t
            self.epi[tau] = list(mul.values())
            for r in range(4):
                if 'nost' in self.diag and tau < 15: continue
                dl = min(hard(r), tgt[r] + 2)
                es = min(dl, tgt[r]) if (self.spread and tau < 15) else e_all
                t = T(I(f'buffer_store_dwordx4 {vr(O+4*r,4)}, v{V_ST}, s[{SO}:{SO+3}], {"0" if tau == 0 else f"s{S_TOFF+tau}"} offen offset:{256*r} {self.stf}'.rstrip(),
                        vm=('O', tau, r)), 4, es, int(dl), deps=[(cv[(r, 3)], 1)], kind='st')
                tasks.append(t)
        for tau in range(16):
            if tau in issued_q: continue
            e = bar_slot[3]
            if tau >= self.NQ: e = max(e, qlast[tau - self.NQ])
            gq = st[tau] - self.PQ
            if gq >= 0: e = max(e, first[('QK', gq)])
            assert e + 8 < qfirst[tau], (tau, e, qfirst[tau])
            prevq = None
            for j in range(4):
                eq = e + (self.qoff + self.qgap*j if self.qgap > 4 else 0)
                t = T(self.qload(tau, j), 4, eq, e + self.qoff + self.qgap*j + (2 if self.qgap > 4 else 0), deps=[(prevq, 0)] if prevq else [], kind='q')
                tasks.append(t); prevq = t
        if 'noq' not in self.diag or True:
            for tau in range(16):
                if 'noq' in self.diag and tau > 3: continue
                if 'nowait' in self.diag and tau > 7: continue
                m = mf[qfirst[tau]]
                m.setdefault('nvm', []).extend([('Q', tau, j) for j in range(4)])
                if qfirst[tau] > 0 and reserve[qfirst[tau] - 1] == 0: reserve[qfirst[tau] - 1] += 4
        B = self.budget
        pend = sorted(tasks, key=lambda t: (t.dl, t.seq))
        ei = 0; lastexp = False
        self.load = []
        for x in range(NS + EXTRA):
            used = reserve[x]; tail = x >= NS - 1; free = (x in drain) or tail
            placed_exp = False
            def place(t):
                nonlocal used
                t.slot = x; post[x].append(t); used += t.cost
            def anyplain():
                for t in pend:
                    if t.e > x + 0 and t.dl > x + 400: break
                    if t.ready(x): return True
                return False
            while ei < len(exps) and exps[ei].ready(x) and (free or exps[ei].dl <= x):
                place(exps[ei]); ei += 1; placed_exp = True
            if not placed_exp and ei < len(exps) and exps[ei].ready(x) and used + 8 <= B + (0) and (not lastexp or not anyplain()):
                place(exps[ei]); ei += 1; placed_exp = True
            progress = True
            while progress:
                progress = False
                for t in pend:
                    if t.slot is not None: continue
                    if t.e > x: continue
                    if not t.ready(x): continue
                    if free or t.dl <= x or used + t.cost <= B:
                        place(t); progress = True
                        break_ = False
                    if used >= B and not free:
                        pass
                pend = [t for t in pend if t.slot is None]
            lastexp = placed_exp
            self.load.append(used)
        assert ei == len(exps) and not pend, (ei, len(exps), len(pend))
        for t in tasks + exps:
            if t.kind in ('cvt', 'exp') and t.slot > t.dl + (1 if t.kind == 'exp' else 0): raise AssertionError(('late', t.it.text, t.slot, t.dl))
        for tau in range(16):
            if tau + 5 < 16:
                for t in tasks:
                    pass
        out = list(prog0)
        sst = {}
        if self.stamps:
            for idx, ph in self.sslots.items(): sst.setdefault(first[ph], []).extend(self.stamp(idx))
        for x in range(NS + EXTRA):
            out += pre[x]
            out += sst.get(x, [])
            if x < NS:
                m = mf[x]
                txt = m['text'].replace('RG', ar(ARING + 4*(m['f'] % R), 4)) if m['f'] is not None else m['text']
                out.append(I(txt, nds=m.get('nds', ()), nvm=m.get('nvm', ()), also_ds=m.get('also', ())))
            out += [t.it for t in post[x]]
        if self.stst:
            tau_, r_, d1, d2 = self.stst
            k = [n for n, it in enumerate(out) if getattr(it, 'vm', None) == ('O', tau_, r_)][0]
            out[k+d2:k+d2] = self.stamp(13)
            out[k+d1:k+d1] = self.stamp(12)
            out[k+1:k+1] = self.stamp(11)
            out[k:k] = self.stamp(10)
        self.post = post; self.mf = mf; self.tasks = tasks; self.ofirst = ofirst
        pos = {id(it): n for n, it in enumerate(out)}
        return out

    def slow(self):
        a = []
        A = lambda s: [a.append(l.strip()) for l in s.strip().split('\n') if l.strip()]
        S0, P0, O0, QF, RG = 0, 64, 96, 128, 144
        V_M, V_T0, V_LL = 200, 201, 202
        A(f'''
        v_cmp_le_u32 vcc, s{S_RNG}, v{V_BAD}
        s_cbranch_vccz L_done
        s_waitcnt vmcnt(0)
        s_mov_b32 s{S_TILE}, 0
        L_slow:
        ''')
        for j in range(4):
            A(f'buffer_load_dwordx4 {vr(QF+4*j,4)}, v{V_Q}, s[{SQ}:{SQ+3}], s{S_TILE} offen offset:{64*j}')
        A('s_waitcnt vmcnt(0)')
        Dd = 6
        seq = [(kb, s, j) for kb in range(8) for s in range(2) for j in range(4)]
        def kread(n):
            kb, s, j = seq[n]
            A(f'ds_read_b128 {vr(RG+4*(n%8),4)}, v{V_K} offset:{kb*8192+(4*s+j)*1024}')
        for n in range(Dd): kread(n)
        for n in range(64):
            kb, s, j = seq[n]
            if n + Dd < 64:
                kread(n + Dd); A(f's_waitcnt lgkmcnt({Dd})')
            else:
                A(f's_waitcnt lgkmcnt({63-n})')
            d = vr(S0 + 8*kb + 4*s, 4)
            A(f'v_mfma_f32_16x16x32_bf16 {d}, {vr(RG+4*(n%8),4)}, {vr(QF+4*j,4)}, {"0" if j == 0 else d}')
        A('s_nop 15')
        A(f'v_max3_f32 v{V_M}, v0, v1, v2')
        for r in range(3, 63, 2):
            A(f'v_max3_f32 v{V_M}, v{V_M}, v{r}, v{r+1}')
        def xl(op, reg):
            A(f'''
            v_mov_b32 v{V_T0}, v{reg}
            s_nop 1
            v_permlane16_swap_b32 v{reg}, v{V_T0}
            s_nop 1
            {op} v{reg}, v{reg}, v{V_T0}
            v_mov_b32 v{V_T0}, v{reg}
            s_nop 1
            v_permlane32_swap_b32 v{reg}, v{V_T0}
            s_nop 1
            {op} v{reg}, v{reg}, v{V_T0}
            ''')
        A(f'v_max_f32 v{V_M}, v{V_M}, v63')
        xl('v_max_f32', V_M)
        A(f'v_mov_b32 v{V_LL}, 0')
        for r in range(64):
            A(f'v_sub_f32 v{r}, v{r}, v{V_M}')
        for r in range(64):
            A(f'v_exp_f32 v{r}, v{r}')
        A('s_nop 1')
        for r in range(64):
            A(f'v_add_f32 v{V_LL}, v{V_LL}, v{r}')
        xl('v_add_f32', V_LL)
        A(f'v_rcp_f32 v{V_LL}, v{V_LL}')
        A('s_nop 1')
        for r in range(64):
            A(f'v_mul_f32 v{r}, v{r}, v{V_LL}')
        for r in range(32):
            A(f'v_cvt_pk_bf16_f32 v{P0+r}, v{2*r}, v{2*r+1}')
        seq2 = [(kb, t) for kb in range(8) for t in range(8)]
        def vread(n):
            kb, t = seq2[n]
            A(f'ds_read_b128 {vr(RG+4*(n%8),4)}, v{V_V0} offset:{kb*8192+t*1024}')
        for n in range(Dd): vread(n)
        for n in range(64):
            kb, t = seq2[n]
            if n + Dd < 64:
                vread(n + Dd); A(f's_waitcnt lgkmcnt({Dd})')
            else:
                A(f's_waitcnt lgkmcnt({63-n})')
            d = vr(O0 + 4*t, 4)
            A(f'v_mfma_f32_16x16x32_bf16 {d}, {vr(P0+4*kb,4)}, {vr(RG+4*(n%8),4)}, {"0" if kb == 0 else d}')
        A('s_nop 15')
        for (r, q) in [(0,0),(1,0),(0,1),(1,1),(2,0),(3,0),(2,1),(3,1),(0,2),(1,2),(2,2),(3,2),(0,3),(1,3),(2,3),(3,3)]:
            A(f'v_cvt_pk_bf16_f32 v{O0+4*r+q}, v{O0+8*q+r}, v{O0+8*q+4+r}')
        A('s_nop 1')
        for r in range(4):
            A(f'buffer_store_dwordx4 {vr(O0+4*r,4)}, v{V_ST}, s[{SO}:{SO+3}], s{S_TILE} offen offset:{256*r}')
        A(f'''
        s_waitcnt vmcnt(0)
        s_add_u32 s{S_TILE}, s{S_TILE}, 4096
        s_cmp_lt_u32 s{S_TILE}, 0x10000
        s_cbranch_scc1 L_slow
        L_done:
        ''')
        return a

    def gen(self):
        sched.SEEN.clear()
        sched.RELAX = bool(self.diag)
        com = self.common()
        items = com + self.program()
        t, dq, vq = waits(items, [], [])
        if self.stamps:
            t += [x.text for x in self.stamp(14)]
            t.append('s_waitcnt vmcnt(0)')
            t += [x.text for x in self.stamp(15)]
        t = fix_hazards(t)
        slow = self.slow()
        assert not check_hazards(t) and not check_hazards(slow)
        fin = []
        if self.stamps:
            fin += ['s_memtime s[34:35]', 's_load_dwordx2 s[4:5], s[0:1], 40', 's_waitcnt lgkmcnt(0)', 'v_mov_b32 v0, 0']
            for i in range(16):
                fin.append(f'v_writelane_b32 v0, s{S_STAMP+2*i}, {i}')
            fin += ['v_writelane_b32 v0, s34, 31', 'v_writelane_b32 v0, s32, 30',
                    f's_lshl_b32 s3, s2, 3', f's_add_u32 s3, s3, s{S_W}', 's_lshl_b32 s3, s3, 7',
                    f's_and_b32 s5, s5, 0xffff', f's_mov_b32 s6, 0x40000', f's_mov_b32 s7, 0x20000',
                    f'v_lshrrev_b32 v1, 2, v{V_K}', 'v_cmp_gt_u32 vcc, 128, v1', 's_and_saveexec_b64 s[8:9], vcc',
                    f'buffer_store_dword v0, v1, s[4:7], s3 offen', 's_waitcnt vmcnt(0)']
        if 'twice' in self.diag:
            t = ['s_mov_b32 s69, 0', 'L_again:'] + t + ['s_waitcnt vmcnt(0) lgkmcnt(0)', 's_barrier', 's_cmp_eq_u32 s69, 1', 's_cbranch_scc1 L_second',
                 's_mov_b32 s69, 1', 'v_mbcnt_lo_u32_b32 v0, -1, 0', 'v_mbcnt_hi_u32_b32 v0, -1, v0', f's_lshl_b32 s3, s{S_W}, 6', 'v_add_u32 v0, s3, v0', 's_branch L_again', 'L_second:']
        body = ['s_cmp_ge_u32 s2, 256', 's_cbranch_scc1 L_end'] + t + slow + fin + ['L_end:', 's_endpgm']
        txt = ''
        for l in body:
            txt += (l if l.endswith(':') else '    ' + l) + '\n'
        self.text_lines = body
        return HEADER.format(grid=256, block=256, lds=LDS_BYTES, name=NAME) + txt + FOOTER.format(name=NAME, vgpr=512, sgpr=102, accum=256)

def first_use(fr_read, f, blk): return True

if __name__ == '__main__':
    n = sys.argv[1]; kw = eval('dict(' + (sys.argv[2] if len(sys.argv) > 2 else '') + ')')
    g = Gen(**kw)
    open(f'ab/{n}.s', 'w').write(g.gen())
    import verify5 as verify4
    lines = g.text_lines; i = lines.index('L_slow:')
    for path in ('' if g.diag else 'kv'):
        errs = verify4.verify(lines[2:i-4], g, path)
        print('verify', path, len(errs), errs[:5])
    ld = g.load
    print('wrote', n, 'NS', g.NS, 'sum load', sum(ld[:g.NS]), 'over8', sum(max(0, x - 8) for x in ld[:g.NS]), 'lines', len(g.text_lines))
```
